```python
import torch

def _softmax(x, axis=-1):
    return torch.softmax(x, dim=axis)
def _gelu(x):
    return torch.nn.functional.gelu(x, approximate="tanh")
def _silu(x):
    return torch.nn.functional.silu(x)
def _sigmoid(x):
    return torch.sigmoid(x)
def _layernorm(x, axis=-1, eps=1e-5):
    m = x.mean(dim=axis, keepdim=True)
    v = x.var(dim=axis, keepdim=True, unbiased=False)
    return (x - m) / torch.sqrt(v + eps)
def _scatter_add(tgt, idx, src, axis=0):
    return tgt.clone().index_add_(axis, idx, src)
def _segment_sum(src, seg, n):
    out = torch.zeros((n,) + src.shape[1:], dtype=src.dtype)
    return out.index_add_(0, seg, src)
def _pad(x, pw):
    flat = tuple(v for pair in reversed(pw) for v in pair)
    return torch.nn.functional.pad(x, flat)

kernel_name = 'standalone__mixer_channel_mlp__prompt'

def setup_inputs():

    _w = (lambda a: (lambda t: t.to(torch.bfloat16) if t.is_floating_point() else t)(torch.as_tensor(a)))
    B, S, D, F = 1, 2048, 1024, 3584
    return {
        "x": _w((lambda *s: torch.randn(*s, dtype=torch.bfloat16) * 0.05)(B, S, D)),
        "w1": _w((lambda *s: torch.randn(*s, dtype=torch.bfloat16) * 0.8)(D, F) * (D ** -0.5)),
        "b1": _w((lambda *s: torch.randn(*s, dtype=torch.bfloat16) * 0.4)(F)),
        "w2": _w((lambda *s: torch.randn(*s, dtype=torch.bfloat16) * 0.05)(F, D) * (F ** -0.5)),
        "b2": _w((lambda *s: torch.randn(*s, dtype=torch.bfloat16) * 0.05)(D)),
    }

def reference(x, w1, b1, w2, b2):
    y = _layernorm(x, axis=-1)
    h = _gelu(torch.einsum("bsd,df->bsf", y, w1) + b1)
    return torch.einsum("bsf,fd->bsd", h, w2) + b2
```

```python
class Asm:
    def __init__(self): self.L=[]
    def __call__(self, *lines):
        for s in lines:
            for t in s.split("\n"):
                t=t.strip()
                if t: self.L.append(t if t.endswith(":") or t.startswith(".") or t.startswith(";") else "    "+t)
    def text(self): return "\n".join(self.L)+"\n"

def header(launch_lines):
    return "\n".join(launch_lines)+'\n.amdgcn_target "amdgcn-amd-amdhsa--gfx950"\n.text\n'
def kstart(name):
    return f".globl {name}\n.p2align 8\n.type {name},@function\n{name}:\n"
def kdesc(name, vgpr=256, sgpr=102, accum=256):
    return f""".amdhsa_kernel {name}
  .amdhsa_next_free_vgpr {vgpr}
  .amdhsa_next_free_sgpr {sgpr}
  .amdhsa_accum_offset {accum}
  .amdhsa_group_segment_fixed_size 0
  .amdhsa_kernarg_size 64
  .amdhsa_user_sgpr_count 2
  .amdhsa_user_sgpr_kernarg_segment_ptr 1
  .amdhsa_system_sgpr_workgroup_id_x 1
  .amdhsa_float_denorm_mode_32 3
.end_amdhsa_kernel
"""
RODATA='.section .rodata,"a"\n.p2align 6\n'
```

```python
from asmlib import *
import struct
KN="standalone__mixer_channel_mlp__prompt_kernel"
M,D,F=2048,1024,3584
WS_H=0; WS_B=16<<20
O_XCH=0; O_ROW=8<<20; O_COL=(8<<20)+65536; O_HF=(8<<20)+(512<<10); O_XF=(8<<20)+(576<<10); O_PROF=16<<20
WSB_SIZE=(17<<20)
PB=155648
P_CS=PB; P_B1=PB+896; P_RS=PB+1792; P_MODE=PB+2816; P_SCR=PB+3072
SLOT=45056
def fbits(x): return "0x%08x"%struct.unpack("<I",struct.pack("<f",x))[0]
K1=-2.0*0.7978845608028654*1.4426950408889634
K2=K1*0.044715
sX,sW1,sW2,sH,sOUT,sWS,sB1,sB2,sDBG=20,24,28,32,36,40,44,48,52
sI,sN,sS,sJ=56,57,58,59
PROFB=76
def S(d): return f"s[{d}:{d+3}]"
def srd(a, d, p, off, size):
    if off: a(f"s_add_u32 s{d}, s{p}, {off}", f"s_addc_u32 s{d+1}, s{p+1}, 0")
    else: a(f"s_mov_b32 s{d}, s{p}", f"s_mov_b32 s{d+1}, s{p+1}")
    a(f"s_mov_b32 s{d+2}, {size}", f"s_mov_b32 s{d+3}, 0x20000")
def rbf(a, v): a(f"v_cvt_pk_bf16_f32 v{v}, v{v}, v{v}", f"v_and_b32 v{v}, 0xffff0000, v{v}")
def vr(r,n): return f"v[{r}:{r+n-1}]"

class Prof:
    def __init__(s, a, on): s.a=a; s.on=on
    def stamp(s, idx, real=False):
        if s.on: s.a(f"s_memrealtime s[{PROFB+2*idx}:{PROFB+2*idx+1}]" if real else f"s_memtime s[{PROFB+2*idx}:{PROFB+2*idx+1}]")
    def flush(s, n, v):
        if not s.on: return
        a=s.a
        a("s_waitcnt lgkmcnt(0)")
        a("s_lshl_b32 s60, s2, 3", "s_add_u32 s60, s60, s3", "s_lshl_b32 s60, s60, 6", f"s_add_u32 s60, s60, {O_PROF}", f"v_mov_b32 v{v}, s60")
        for i in range(n):
            a(f"v_mov_b32 v{v+1}, s{PROFB+2*i}", f"buffer_store_dword v{v+1}, v{v}, {S(sWS)}, 0 offen offset:{4*i}", "s_nop 1")
        a("s_waitcnt vmcnt(0)")

def interleave(a, mf, others, start=0):
    o=list(others)
    for i,m in enumerate(mf):
        a(m)
        if i>=start and o: a(o.pop(0))
    for x in o: a(x)

def gelu_group(a, regs, T, outs, vK, pre):
    n=len(regs); pr=lambda r:vr(r,2)
    for x in pre: a(x)
    for i,r in enumerate(regs): a(f"v_pk_mul_f32 {pr(T+2*i)}, {pr(r)}, {pr(r)}")
    for i,r in enumerate(regs): a(f"v_pk_fma_f32 {pr(T+2*i)}, {pr(T+2*i)}, {pr(vK)}, {pr(vK)} op_sel:[0,1,0] op_sel_hi:[1,1,0]")
    for i,r in enumerate(regs): a(f"v_pk_mul_f32 {pr(T+2*i)}, {pr(T+2*i)}, {pr(r)}")
    for i in range(2*n): a(f"v_exp_f32 v{T+i}, v{T+i}")
    for i,r in enumerate(regs): a(f"v_pk_add_f32 {pr(T+2*i)}, {pr(T+2*i)}, 1.0 op_sel_hi:[1,0]")
    for i in range(2*n): a(f"v_rcp_f32 v{T+i}, v{T+i}")
    for i,r in enumerate(regs): a(f"v_pk_mul_f32 {pr(T+2*i)}, {pr(T+2*i)}, {pr(r)}")
    for i,r in enumerate(regs): a(f"v_cvt_pk_bf16_f32 v{outs[i]}, v{T+2*i}, v{T+2*i+1}")

def gen(prof=False, NB=10, prio=1, w2_touch=6, row0=2, col0=5, force_slow=False, hst="", clean=None, korder="rot",
        ld1="", ld2a="", ld2b="", svld="", spin=0x20000, outst=""):
    a=Asm(); P=Prof(a,prof)
    NA=20-NB
    L=254
    unitB=lambda k: (7+(k%NB))*8192
    aring=list(range(7))+list(range(7+NB,20))
    unitA=lambda k: aring[k%NA]*8192
    a("s_cmp_ge_u32 s2, 256", "s_cbranch_scc1 L_end")
    P.stamp(0,True); P.stamp(1)
    a("s_load_dwordx16 s[4:19], s[0:1], 0")
    a("v_lshrrev_b32 v1, 6, v0", f"v_and_b32 v{L}, 63, v0", "v_readfirstlane_b32 s3, v1")
    a(f"s_and_b32 s{sS}, s2, 1", f"s_lshr_b32 s{sI}, s2, 1", f"s_and_b32 s{sI}, s{sI}, 3", f"s_lshl_b32 s{sI}, s{sI}, 2",
      "s_lshr_b32 s60, s2, 6", f"s_add_u32 s{sI}, s{sI}, s60", f"s_lshr_b32 s{sN}, s2, 3", f"s_and_b32 s{sN}, s{sN}, 7",
      f"s_lshl_b32 s{sJ}, s{sS}, 3", f"s_add_u32 s{sJ}, s{sJ}, s{sN}")
    a("s_cmp_lt_u32 s3, 4", "s_cbranch_scc1 L_compute", "s_cmp_ge_u32 s3, 6", "s_cbranch_scc1 L_service")
    VA=8; VB=16
    a("s_and_b32 s61, s3, 1")
    a(f"v_lshrrev_b32 v1, 3, v{L}", f"v_and_b32 v2, 7, v{L}", "v_xor_b32 v2, v2, v1", "v_lshlrev_b32 v2, 4, v2", "v_lshl_add_u32 v2, v1, 11, v2")
    a(f"s_lshl_b32 s62, s{sI}, 18", "s_lshl_b32 s63, s61, 17", "s_add_u32 s62, s62, s63")
    for t in range(8): a(f"s_add_u32 s63, s62, {t*16384-(t%4)*1024}", f"v_add_u32 v{VA+t}, s63, v2")
    a("s_mul_i32 s62, s61, 229376", f"s_mul_i32 s63, s{sJ}, 448", "s_add_u32 s62, s62, s63")
    for t in range(7):
        a(f"v_add_u32 v1, {64*t}, v{L}", "v_mul_u32_u24 v2, 2341, v1", "v_lshrrev_b32 v2, 16, v2")
        a("v_mul_u32_u24 v3, 28, v2", "v_sub_u32 v3, v1, v3")
        a("v_lshrrev_b32 v4, 2, v2", "v_and_b32 v4, 2, v4", "v_xor_b32 v3, v3, v4")
        a("v_mul_u32_u24 v2, 7168, v2", "v_lshl_add_u32 v2, v3, 4, v2", "v_add_u32 v2, s62, v2")
        if t%4: a(f"v_subrev_u32 v{VB+t}, {(t%4)*1024}, v2")
        else: a(f"v_mov_b32 v{VB+t}, v2")
        a(f"v_add_u32 v{VB+7+t}, {114688-((t+7)%4)*1024}, v2")
    a("s_lshl_b32 s64, s61, 13", "s_mul_i32 s65, s61, 14336", "s_add_u32 s65, s65, 16384")
    a("s_waitcnt lgkmcnt(0)")
    srd(a,sX,4,0,M*D*2); srd(a,sW1,6,0,D*F*2)
    def issue1(st):
        sl=(st%3)*SLOT
        a(f"s_mov_b32 s66, {st*128}", f"s_mov_b32 s67, {st*458752}")
        seq=[("B",0),("A",0),("B",1),("A",1),("B",2),("B",3)]
        for kind,g in seq:
            if kind=="A":
                a(f"s_add_u32 m0, s64, {sl+g*4096}", "s_nop 0")
                for t in range(4*g,4*g+4): a(f"buffer_load_dwordx4 v{VA+t}, {S(sX)}, s66 offen offset:{(t%4)*1024} {ld1} lds")
            else:
                a(f"s_add_u32 m0, s65, {sl+g*4096}", "s_nop 0")
                for t in range(4*g,min(14,4*g+4)): a(f"buffer_load_dwordx4 v{VB+t}, {S(sW1)}, s67 offen offset:{(t%4)*1024} {ld1} lds")
    issue1(0); issue1(1)
    srd(a,sW2,10,0,D*F*2); srd(a,sH,18,WS_H,M*F*2); srd(a,sWS,18,WS_B,WSB_SIZE)
    a("s_waitcnt vmcnt(22)", "s_barrier")
    P.stamp(2)
    issue1(2)
    for st in range(13):
        a("s_waitcnt vmcnt(22)", "s_barrier"); issue1(st+3)
    a("s_waitcnt vmcnt(22)", "s_barrier")
    a("s_waitcnt vmcnt(0)", "s_barrier")
    P.stamp(3)
    a("s_mov_b32 s61, 0", "s_cmp_eq_u32 s3, 4", "s_cbranch_scc1 L_streamA", "s_branch L_streamB")
    a("L_service:")
    a("s_and_b32 s61, s3, 1")
    RL=8; CL=40; AC=104
    a(f"v_lshrrev_b32 v1, 4, v{L}", f"v_and_b32 v2, 15, v{L}", "v_lshlrev_b32 v2, 4, v2", "v_lshl_add_u32 v2, v1, 11, v2")
    a(f"s_lshl_b32 s62, s{sI}, 7", f"s_lshl_b32 s63, s{sJ}, 3", "s_add_u32 s62, s62, s63", "s_lshl_b32 s63, s61, 2", "s_add_u32 s62, s62, s63")
    a("s_lshl_b32 s64, s62, 11")
    a("s_lshl_b32 s65, s62, 3", f"s_add_u32 s65, s65, {O_ROW}", "v_lshlrev_b32 v3, 3, v1")
    a(f"v_lshrrev_b32 v4, 5, v{L}", f"v_and_b32 v5, 31, v{L}", "v_min_u32 v5, 27, v5", "v_mul_u32_u24 v6, 7168, v4", "v_lshl_add_u32 v6, v5, 4, v6")
    a(f"s_lshl_b32 s66, s{sI}, 1", "s_add_u32 s66, s66, s61", "s_mul_i32 s66, s66, 229376", f"s_mul_i32 s67, s{sJ}, 448", "s_add_u32 s66, s66, s67")
    a("v_lshlrev_b32 v7, 5, v5", "v_lshl_add_u32 v7, v4, 4, v7")
    a(f"s_lshl_b32 s68, s{sJ}, 4", f"s_add_u32 s69, s68, s{sI}", "s_mul_i32 s69, s69, 896", f"s_add_u32 s69, s69, {O_COL}")
    a("s_mul_i32 s68, s68, 896", f"s_add_u32 s68, s68, {O_COL}")
    for r in range(4): a(f"v_mov_b32 v{112+r}, -1")
    a("v_mov_b32 v116, 0", f"v_and_b32 v117, 3, v{L}", "v_lshlrev_b32 v117, 2, v117")
    a("s_waitcnt lgkmcnt(0)")
    srd(a,sX,4,0,M*D*2); srd(a,sW1,6,0,D*F*2); srd(a,sWS,18,WS_B,WSB_SIZE)
    a(f"buffer_store_dwordx2 v[112:113], v3, {S(sWS)}, s65 offen sc1")
    a("s_cmp_eq_u32 s61, 0", "s_cbranch_scc1 L_sv_r0")
    a(f"buffer_store_dwordx4 v[112:115], v7, {S(sWS)}, s69 offen sc1", "s_branch L_sv_r1")
    a("L_sv_r0:")
    a(f"s_lshl_b32 s70, s{sI}, 1", f"s_add_u32 s70, s70, s{sS}", "s_lshl_b32 s70, s70, 7", f"s_lshl_b32 s71, s{sN}, 4", "s_add_u32 s70, s70, s71", f"s_add_u32 s70, s70, {O_HF}")
    a(f"buffer_store_dword v116, v117, {S(sWS)}, s70 offen sc1")
    a("s_lshl_b32 s70, s2, 7", f"s_add_u32 s70, s70, {O_XF}")
    a(f"buffer_store_dword v116, v117, {S(sWS)}, s70 offen sc1")
    a("L_sv_r1:")
    for t in range(8): a(f"buffer_load_dwordx4 {vr(RL+4*t,4)}, v2, {S(sX)}, s64 offen offset:{t*256} {svld}")
    for t in range(16): a(f"s_add_u32 s70, s66, {t*14336}", f"buffer_load_dwordx4 {vr(CL+4*t,4)}, v6, {S(sW1)}, s70 offen {svld}")
    srd(a,sW2,10,0,D*F*2); srd(a,sH,18,WS_H,M*F*2); srd(a,sB1,8,0,F*2); srd(a,sDBG,16,0,256)
    work={b:[] for b in range(-1,15)}
    SM,SQ=120,124
    rows=[]
    for d in range(32):
        r=RL+d; k=d%4
        rows+=[f"v_lshlrev_b32 v118, 16, v{r}", f"v_and_b32 v119, 0xffff0000, v{r}"]
        if d<4: rows+=[f"v_add_f32 v{SM+k}, v118, v119", f"v_mul_f32 v{SQ+k}, v118, v118", f"v_fmac_f32 v{SQ+k}, v119, v119"]
        else: rows+=[f"v_add_f32 v{SM+k}, v{SM+k}, v118", f"v_fmac_f32 v{SQ+k}, v118, v118", f"v_add_f32 v{SM+k}, v{SM+k}, v119", f"v_fmac_f32 v{SQ+k}, v119, v119"]
    half=len(rows)//2//6*6
    work[row0]+=["s_waitcnt vmcnt(16)"]+rows[:half]
    flag=Asm()
    flag("s_cmp_eq_u32 s61, 0", "s_cbranch_scc0 L_sv_nf", "s_getreg_b32 s70, hwreg(HW_REG_XCC_ID, 0, 4)", "s_or_b32 s70, s70, 0x80",
         "v_mov_b32 v128, s70", "v_mov_b32 v129, s2", f"buffer_store_byte v128, v129, {S(sDBG)}, 0 offen sc1", "L_sv_nf:")
    work[row0+1]+=flag.L+rows[half:]
    fin=Asm()
    fin(f"v_add_f32 v{SM}, v{SM}, v{SM+1}", f"v_add_f32 v{SM+2}, v{SM+2}, v{SM+3}", f"v_add_f32 v{SQ}, v{SQ}, v{SQ+1}", f"v_add_f32 v{SQ+2}, v{SQ+2}, v{SQ+3}",
        f"v_add_f32 v{SM}, v{SM}, v{SM+2}", f"v_add_f32 v{SQ}, v{SQ}, v{SQ+2}")
    for m in ["quad_perm:[1,0,3,2]","quad_perm:[2,3,0,1]","row_half_mirror","row_mirror"]:
        fin("s_nop 1", f"v_add_f32_dpp v{SM}, v{SM}, v{SM} {m} row_mask:0xf bank_mask:0xf", f"v_add_f32_dpp v{SQ}, v{SQ}, v{SQ} {m} row_mask:0xf bank_mask:0xf")
    fin(f"v_mul_f32 v{SM}, {fbits(1/1024)}, v{SM}", f"v_mul_f32 v{SQ}, {fbits(1/1024)}, v{SQ}", f"v_fma_f32 v{SQ}, -v{SM}, v{SM}, v{SQ}", f"v_max_f32 v{SQ}, 0, v{SQ}")
    rbf(fin,SM); rbf(fin,SQ)
    fin(f"v_add_f32 v{SQ}, {fbits(1e-5)}, v{SQ}"); rbf(fin,SQ)
    fin(f"v_sqrt_f32 v{SQ}, v{SQ}", "s_nop 0"); rbf(fin,SQ)
    fin(f"v_rcp_f32 v130, v{SQ}", "s_nop 0", f"v_mul_f32 v131, -v{SM}, v130")
    fin(f"buffer_store_dwordx2 v[130:131], v3, {S(sWS)}, s65 offen sc1")
    work[row0+2]+=fin.L
    cols=[]
    for t in range(16):
        for d in range(4):
            r=CL+4*t+d
            if t==0: cols+=[f"v_lshlrev_b32 v{AC+2*d}, 16, v{r}", f"v_and_b32 v{AC+2*d+1}, 0xffff0000, v{r}"]
            else: cols+=[f"v_lshlrev_b32 v118, 16, v{r}", f"v_and_b32 v119, 0xffff0000, v{r}", f"v_add_f32 v{AC+2*d}, v{AC+2*d}, v118", f"v_add_f32 v{AC+2*d+1}, v{AC+2*d+1}, v119"]
    c1=8+4*23; c2=c1+4*24
    work[col0]+=["s_waitcnt vmcnt(1)"]+cols[:c1]
    work[col0+1]+=cols[c1:c2]
    red=Asm()
    for e in range(8): red(f"v_mov_b32 v{132+e}, v{AC+e}")
    for e in range(8): red(f"v_permlane32_swap_b32 v{132+e}, v{AC+e}")
    red("s_nop 0")
    for e in range(8): red(f"v_add_f32 v{AC+e}, v{AC+e}, v{132+e}")
    red(f"v_cmp_lt_u32 vcc, 31, v{L}", "s_nop 1")
    for e in range(4): red(f"v_cndmask_b32 v{132+e}, v{AC+e}, v{AC+4+e}, vcc")
    red(f"v_add_u32 v136, {P_SCR}, v7")
    red("s_cmp_eq_u32 s61, 0", "s_cbranch_scc0 L_sv_nw", "ds_write_b128 v136, v[132:135]", "s_waitcnt lgkmcnt(0)", "L_sv_nw:")
    work[col0+2]+=cols[c2:]+red.L
    w=Asm()
    w(f"v_lshlrev_b32 v137, 2, v{L}", "s_cmp_eq_u32 s61, 0", "s_cbranch_scc1 L_sv_p0")
    w("ds_read_b128 v[140:143], v136", "s_waitcnt lgkmcnt(0)")
    for e in range(4): w(f"v_add_f32 v{132+e}, v{132+e}, v{140+e}")
    w(f"buffer_store_dwordx4 v[132:135], v7, {S(sWS)}, s69 offen sc1", "s_branch L_sv_p1")
    w("L_sv_p0:")
    w(f"buffer_load_dword v138, v137, {S(sDBG)}, 0 offen sc1")
    w("L_sv_p1:")
    work[col0+3]+=w.L
    w=Asm()
    w("s_cmp_eq_u32 s61, 0", "s_cbranch_scc0 L_sv_c1", "s_mov_b32 s70, 0", "s_mov_b32 s71, 0x80808080")
    w("L_sv_c0:", "s_waitcnt vmcnt(0)", "v_and_b32 v139, s71, v138", "v_cmp_ne_u32 vcc, s71, v139", "s_add_u32 s70, s70, 1", "s_nop 1",
      "s_cbranch_vccz L_sv_c2", f"s_cmp_ge_u32 s70, {spin}", "s_cbranch_scc1 L_sv_c2",
      f"buffer_load_dword v138, v137, {S(sDBG)}, 0 offen sc1", "s_branch L_sv_c0")
    w("L_sv_c2:")
    w("v_readlane_b32 s72, v138, 0", "v_readlane_b32 s73, v138, 1", f"v_and_b32 v139, 1, v{L}", "v_cmp_eq_u32 vcc, 1, v139", "v_mov_b32 v140, s72", "v_mov_b32 v141, s73",
      "s_nop 1", "v_cndmask_b32 v140, v140, v141, vcc", "v_cmp_ne_u32 vcc, v140, v138", "s_nop 1", "s_cmp_lg_u64 vcc, 0", "s_cselect_b32 s72, 1, %d"%(1 if force_slow else 0),
      "v_mov_b32 v140, s72", f"v_mov_b32 v141, {P_MODE}", "ds_write_b32 v141, v140", "s_waitcnt lgkmcnt(0)")
    w("L_sv_c1:")
    work[col0+4]+=w.L
    G0=col0+5
    w=Asm()
    w(f"v_min_u32 v144, 55, v{L}", "s_mov_b32 s70, 0")
    w("v_lshlrev_b32 v145, 4, v144")
    for g in range(1,4): w(f"v_add_u32 v{145+g}, {3584*g}, v145")
    w("s_cmp_eq_u32 s61, 0", "s_cbranch_scc1 L_sv_g0")
    def colloads(w):
        for ii in range(16): w(f"buffer_load_dwordx4 {vr(CL+4*ii,4)}, v{145+ii//4}, {S(sWS)}, s68 offen offset:{(ii%4)*896} sc1")
    colloads(w)
    w("s_branch L_sv_g1")
    w("L_sv_g0:")
    w(f"s_lshl_b32 s71, s{sI}, 10", f"s_add_u32 s71, s71, {O_ROW}", f"v_lshlrev_b32 v145, 4, v{L}", "v_lshlrev_b32 v146, 3, v144", f"s_mul_i32 s72, s{sJ}, 448")
    w(f"buffer_load_dwordx2 v[12:13], v146, {S(sB1)}, s72 offen", f"buffer_load_dwordx4 v[8:11], v145, {S(sWS)}, s71 offen sc1")
    w("L_sv_g1:")
    work[G0]+=w.L
    w=Asm()
    w("s_cmp_eq_u32 s61, 0", "s_cbranch_scc1 L_sv_h0")
    w("L_sv_h2:", "s_waitcnt vmcnt(0)")
    for e in range(4): w(f"v_add_f32 v{132+e}, v{CL+e}, v{CL+4+e}")
    for ii in range(2,16):
        for e in range(4): w(f"v_add_f32 v{132+e}, v{132+e}, v{CL+4*ii+e}")
    w("v_cmp_u_f32 vcc, v132, v133", "v_cmp_u_f32 s[72:73], v134, v135", "s_add_u32 s70, s70, 1", "s_nop 1", "s_or_b64 vcc, vcc, s[72:73]",
      "s_cbranch_scc0 L_sv_h3", f"s_cmp_ge_u32 s70, {spin//16}", "s_cbranch_scc1 L_sv_h3")
    colloads(w)
    w("s_branch L_sv_h2")
    w("L_sv_h3:", f"v_add_u32 v145, {P_CS}, v145", "ds_write_b128 v145, v[132:135]", "s_waitcnt lgkmcnt(0)", "s_branch L_sv_h1")
    w("L_sv_h0:", "s_waitcnt vmcnt(0)")
    w("v_cmp_u_f32 vcc, v8, v9", "v_cmp_u_f32 s[72:73], v10, v11", "s_add_u32 s70, s70, 1", "s_nop 1", "s_or_b64 vcc, vcc, s[72:73]",
      "s_cbranch_scc0 L_sv_h4", f"s_cmp_ge_u32 s70, {spin//16}", "s_cbranch_scc1 L_sv_h4",
      f"buffer_load_dwordx4 v[8:11], v145, {S(sWS)}, s71 offen sc1", "s_branch L_sv_h0")
    w("L_sv_h4:", f"v_add_u32 v145, {P_RS}, v145", "ds_write_b128 v145, v[8:11]")
    w("v_lshlrev_b32 v16, 16, v12", "v_and_b32 v17, 0xffff0000, v12", "v_lshlrev_b32 v18, 16, v13", "v_and_b32 v19, 0xffff0000, v13")
    w(f"v_lshlrev_b32 v146, 4, v144", f"v_add_u32 v146, {P_B1}, v146", "ds_write_b128 v146, v[16:19]", "s_waitcnt lgkmcnt(0)")
    w("L_sv_h1:")
    work[G0+2]+=w.L
    assert G0+2<=14
    for b in range(-1,15):
        a("s_barrier")
        for x in work[b]: a(x)
    P.stamp(3)
    a("s_mov_b32 s61, 1", "s_cmp_eq_u32 s3, 6", "s_cbranch_scc1 L_streamA")
    def tile_sgpr(p, dst):
        if korder=="rot": a(f"s_add_u32 s{dst}, s{sN}, {p}", f"s_and_b32 s{dst}, s{dst}, 7")
        else:
            if p==0: a(f"s_mov_b32 s{dst}, s{sN}")
            else: a(f"s_cmp_gt_u32 s{sN}, {p-1}", f"s_cselect_b32 s{dst}, {p-1}, {p}")
        a(f"s_lshl_b32 s60, s{sS}, 3", f"s_add_u32 s{dst}, s{dst}, s60")
    a("L_streamB:")
    VB2=8
    a("s_lshl_b32 s62, s61, 15", f"s_lshl_b32 s63, s{sN}, 8", "s_add_u32 s62, s62, s63", "s_lshl_b32 s64, s61, 12")
    for t in range(4):
        a(f"v_lshrrev_b32 v1, 4, v{L}", f"v_add_u32 v1, {4*t}, v1", "v_and_b32 v2, 7, v1", "v_lshlrev_b32 v2, 1, v2", f"v_and_b32 v3, 15, v{L}", "v_xor_b32 v2, v2, v3")
        a("v_lshlrev_b32 v1, 11, v1", "v_lshl_add_u32 v1, v2, 4, v1", f"s_sub_u32 s63, s62, {t*1024}", f"v_add_u32 v{VB2+t}, s63, v1")
    def issueB(k):
        if k%7==0: tile_sgpr(k//7,65); a("s_mul_i32 s65, s65, 458752")
        a(f"s_add_u32 s66, s65, {(k%7)*65536}", f"s_add_u32 m0, s64, {unitB(k)}", "s_nop 0")
        for t in range(4): a(f"buffer_load_dwordx4 v{VB2+t}, {S(sW2)}, s66 offen offset:{t*1024} {ld2b} lds")
    for k in range(NB): issueB(k)
    a("s_barrier")
    a(f"s_waitcnt vmcnt({4*(NB-2)})", "s_barrier")
    nxt=NB
    for b in range(27):
        a(f"s_waitcnt vmcnt({4*(nxt-(2*b+4))})", "s_barrier")
        for k in (2*b+NB,2*b+NB+1):
            if k<56: issueB(k); nxt=k+1
    P.stamp(4); P.stamp(5,True); P.flush(6,2)
    a("s_endpgm")
    a("L_streamA:")
    a("s_lshl_b32 s64, s61, 12", f"v_lshlrev_b32 v1, 4, v{L}", "v_add_u32 v8, s64, v1")
    a(f"s_mul_i32 s62, s{sI}, {112*8192}")
    a(f"s_lshl_b32 s70, s{sI}, 1", f"s_add_u32 s70, s70, s{sS}", "s_lshl_b32 s70, s70, 7", f"s_add_u32 s70, s70, {O_HF}")
    a(f"v_and_b32 v9, 31, v{L}", "v_lshlrev_b32 v9, 2, v9", f"v_mov_b32 v10, {P_MODE}")
    a("s_barrier")
    a("ds_read_b32 v11, v10", "s_waitcnt lgkmcnt(0)", "v_readfirstlane_b32 s72, v11")
    a("s_barrier")
    a("s_barrier")
    P.stamp(4)
    a("s_mov_b32 s71, 0")
    a("L_a_poll:", f"buffer_load_dword v11, v9, {S(sWS)}, s70 offen sc1", "s_add_u32 s71, s71, 1", "s_waitcnt vmcnt(0)",
      "v_cmp_ne_u32 vcc, 1, v11", f"s_cmp_ge_u32 s71, {spin}", "s_cbranch_scc1 L_a_go", "s_nop 0", "s_cbranch_vccnz L_a_poll")
    a("L_a_go:")
    a("s_cmp_eq_u32 s72, 0", "s_cbranch_scc1 L_a_fast", "buffer_inv sc1", "s_waitcnt vmcnt(0)", "L_a_fast:")
    P.stamp(5)
    def issueA(k):
        if k%7==0: tile_sgpr(k//7,65); a("s_mul_i32 s65, s65, 57344", "s_add_u32 s65, s65, s62")
        a(f"s_add_u32 s66, s65, {(k%7)*8192}", f"s_add_u32 m0, s64, {unitA(k)}", "s_nop 0")
        for t in range(4): a(f"buffer_load_dwordx4 v8, {S(sH)}, s66 offen offset:{t*1024} {ld2a} lds")
    for k in range(7,NA+2): issueA(k)
    nxt=NA+2
    for b in range(1,27):
        need=2*b+4
        if need>7: a(f"s_waitcnt vmcnt({4*(nxt-need)})")
        a("s_barrier")
        for k in (2*b+NA,2*b+NA+1):
            if k<56: issueA(k); nxt=k+1
    P.stamp(6); P.stamp(7,True); P.flush(8,2)
    a("s_endpgm")
    a("L_compute:")
    X=[112,156]; W=[128,172]; AD=200; AD2=212; HO=230; HO2=231; vK=232; OO=234; XO=235; PA=236; PR=237; TW=238; BI=240; JK=244
    a("s_lshr_b32 s61, s3, 1", "s_and_b32 s62, s3, 1")
    a(f"v_and_b32 v1, 15, v{L}", f"v_lshrrev_b32 v2, 4, v{L}")
    a("s_lshl_b32 s63, s61, 13", "v_lshlrev_b32 v3, 7, v1", "v_add_u32 v3, s63, v3")
    a("v_and_b32 v4, 7, v1", "v_xor_b32 v4, v4, v2", f"v_lshl_add_u32 v{AD}, v4, 4, v3", f"v_xor_b32 v{AD+1}, 64, v{AD}")
    a("v_lshrrev_b32 v3, 2, v1", "v_lshl_add_u32 v3, v2, 3, v3", "v_mul_u32_u24 v3, 448, v3")
    a("v_and_b32 v4, 3, v1", "v_lshl_add_u32 v3, v4, 3, v3", "s_mul_i32 s63, s62, 224", "v_add_u32 v3, s63, v3")
    a("v_and_b32 v4, 1, v2", "v_lshlrev_b32 v4, 5, v4")
    a("s_cmp_eq_u32 s62, 0", "s_cselect_b32 s63, 1, -1", "v_mul_lo_u32 v4, s63, v4")
    a(f"v_add_u32 v{AD+2}, v3, v4", f"v_sub_u32 v{AD+3}, v3, v4")
    for s in (1,2):
        for r in range(4): a(f"v_add_u32 v{AD+4*s+r}, {SLOT*s}, v{AD+r}")
    a("s_lshl_b32 s63, s61, 12", f"v_lshlrev_b32 v{HO}, 4, v{L}", f"v_add_u32 v{HO}, s63, v{HO}")
    a(f"v_lshlrev_b32 v{AD2+1}, 3, v{L}", f"v_add_u32 v{AD2+1}, s63, v{AD2+1}", f"v_mov_b32 v{AD2}, v{HO}")
    a("s_lshl_b32 s63, s62, 9", f"v_add_u32 v{HO2}, s63, v{AD2+1}")
    a(f"v_mov_b32 v{vK}, {fbits(K1)}", f"v_mov_b32 v{vK+1}, {fbits(K2)}")
    a("v_lshrrev_b32 v3, 2, v1", "v_lshl_add_u32 v3, v2, 2, v3")
    a("v_and_b32 v4, 7, v3", "v_lshlrev_b32 v3, 8, v3", "v_and_b32 v5, 3, v1", "v_lshl_add_u32 v3, v5, 3, v3")
    a("s_lshl_b32 s63, s62, 2", f"s_lshl_b32 s64, s{sS}, 1", "s_add_u32 s63, s63, s64")
    for nt in range(4): a(f"s_xor_b32 s64, s63, {nt}", "v_xor_b32 v5, s64, v4", f"v_lshl_add_u32 v{AD2+2+nt}, v5, 5, v3")
    for cp in (1,2):
        for r in range(6): a(f"v_add_u32 v{AD2+6*cp+r}, {65536*cp}, v{AD2+r}")
    a(f"s_lshl_b32 s64, s{sN}, 8", "s_lshl_b32 s65, s63, 5", "s_add_u32 s74, s64, s65")
    a("v_lshlrev_b32 v3, 11, v1", "v_and_b32 v4, 1, v2", "v_lshl_add_u32 v3, v4, 5, v3", "v_lshrrev_b32 v4, 1, v2", f"v_lshl_add_u32 v{OO}, v4, 4, v3")
    a(f"s_lshl_b32 s64, s{sI}, 18", "s_lshl_b32 s65, s61, 17", "s_add_u32 s64, s64, s65", "s_add_u32 s75, s64, s74")
    a("s_lshl_b32 s64, s3, 13", f"v_lshlrev_b32 v3, 4, v{L}", f"v_add_u32 v{XO}, s64, v3")
    a("s_mul_i32 s64, s62, 448", f"s_add_u32 s64, s64, {P_CS}", "v_lshlrev_b32 v3, 4, v2", f"v_add_u32 v{PA}, s64, v3")
    a("s_lshl_b32 s64, s61, 9", f"s_add_u32 s64, s64, {P_RS}", "v_lshlrev_b32 v3, 3, v1", f"v_add_u32 v{PR}, s64, v3")
    a(f"v_min_u32 v3, 55, v{L}", f"v_lshlrev_b32 v{TW}, 7, v3", "s_lshl_b32 s64, s2, 2", "s_add_u32 s64, s64, s3", "s_mul_i32 s73, s64, 7168")
    a("v_lshlrev_b32 v3, 3, v2")
    a("s_waitcnt lgkmcnt(0)")
    srd(a,sW2,10,0,D*F*2); srd(a,sH,18,WS_H,M*F*2); srd(a,sWS,18,WS_B,WSB_SIZE); srd(a,sOUT,14,0,M*D*2); srd(a,sB2,12,0,D*2)
    for nt in range(2): a(f"buffer_load_dwordx2 {vr(BI+2*nt,2)}, v3, {S(sB2)}, s74 offen offset:{nt*32}")
    if w2_touch==-1: a(f"buffer_load_dword v{JK}, v{TW}, {S(sW2)}, s73 offen")
    if prio: a(f"s_setprio {prio}")
    def reads1(st,h,set_):
        b=AD+4*(st%3)
        xr=[f"ds_read_b128 {vr(X[set_]+4*mt,4)}, v{b+h} offset:{mt*2048}" for mt in range(4)]
        wr=[f"ds_read_b64_tr_b16 {vr(W[set_]+4*nt+2*q,2)}, v{b+2+(nt&1)} offset:{16384+h*14336+q*1792+nt*32}" for nt in range(7) for q in range(2)]
        return wr[0:2]+xr+wr[2:]
    def mf1(set_,first):
        o=[]
        for nt in range(7):
            for mt in range(4):
                c=(mt*7+nt)*4
                o.append(f"v_mfma_f32_16x16x32_bf16 {vr(c,4)}, {vr(W[set_]+4*nt,4)}, {vr(X[set_]+4*mt,4)}, "+("0" if first else vr(c,4)))
        return o
    CS=112; B1=140; RS=200
    a("s_barrier")
    P.stamp(2)
    for x in reads1(0,0,0): a(x)
    for st in range(16):
        a("s_waitcnt lgkmcnt(0)")
        extra=[f"buffer_load_dword v{JK}, v{TW}, {S(sW2)}, s73 offen"] if st==w2_touch else []
        interleave(a, mf1(0,st==0), reads1(st,1,1)+extra)
        a("s_waitcnt lgkmcnt(0)", "s_barrier")
        if st<15: interleave(a, mf1(1,False), reads1(st+1,0,0))
        else:
            pr=[f"ds_read_b64 {vr(RS+2*mt,2)}, v{PR} offset:{mt*128}" for mt in range(4)]
            pr+=[f"ds_read_b128 {vr(CS+4*nt,4)}, v{PA} offset:{nt*64}" for nt in range(7)]
            pr+=[f"ds_read_b128 {vr(B1+4*nt,4)}, v{PA} offset:{896+nt*64}" for nt in range(4)]
            pr+=[f"v_mov_b32 v{JK+1}, {P_MODE}", f"ds_read_b32 v{JK+1}, v{JK+1}"]
            interleave(a, mf1(1,False), pr)
    for nt in range(4,7): a(f"ds_read_b128 {vr(B1+4*nt,4)}, v{PA} offset:{896+nt*64}")
    P.stamp(3)
    a(f"s_mul_i32 s63, s{sI}, 112", f"s_mul_i32 s64, s{sJ}, 7", "s_add_u32 s63, s63, s64", "s_lshl_b32 s63, s63, 13")
    a("s_add_u32 s66, s63, 24576", "s_lshl_b32 s64, s62, 15", "s_add_u32 s63, s63, s64", "s_add_u32 s64, s63, 8192", "s_add_u32 s65, s63, 16384")
    a("s_waitcnt lgkmcnt(0)", f"v_readfirstlane_b32 s72, v{JK+1}")
    a("s_cmp_eq_u32 s62, 0", "s_cbranch_scc0 L_ep1")
    T=168; OUT=[176,180,184,188]
    def pre(regs,nts,mts):
        o=[]
        for i,(r,nt,mt) in enumerate(zip(regs,nts,mts)):
            e=2*(i%2)
            o.append(f"v_pk_fma_f32 {vr(T+2*i,2)}, {vr(CS+4*nt+e,2)}, {vr(RS+2*mt,2)}, {vr(B1+4*nt+e,2)} op_sel:[0,1,0] op_sel_hi:[1,1,1]")
        for i,(r,nt,mt) in enumerate(zip(regs,nts,mts)):
            o.append(f"v_pk_fma_f32 {vr(r,2)}, {vr(r,2)}, {vr(RS+2*mt,2)}, {vr(T+2*i,2)} op_sel:[0,0,0] op_sel_hi:[1,0,1]")
        return o
    for wn in range(2):
        if wn==1: a("L_ep1:")
        k=0
        pairs=[(0,1),(2,3),(4,5)] if wn==0 else [(1,2),(3,4),(5,6)]
        odd=6 if wn==0 else 0
        for pi,(t0,t1) in enumerate(pairs):
            for mt in range(4):
                regs=[(mt*7+t0)*4,(mt*7+t0)*4+2,(mt*7+t1)*4,(mt*7+t1)*4+2]
                o=OUT[k%4]; k+=1
                gelu_group(a,regs,T,[o,o+1,o+2,o+3],vK,pre(regs,[t0,t0,t1,t1],[mt]*4))
                a(f"buffer_store_dwordx4 {vr(o,4)}, v{HO}, {S(sH)}, s{63+pi} offen offset:{mt*1024} {hst}")
                a(f"ds_write_b128 v{HO}, {vr(o,4)} offset:{(pi+4*wn)*8192+mt*1024}")
        for mp_ in range(2):
            regs=[]; mts=[]
            for mt in (2*mp_,2*mp_+1): regs+=[(mt*7+odd)*4,(mt*7+odd)*4+2]; mts+=[mt,mt]
            o=OUT[k%4]; k+=1
            gelu_group(a,regs,T,[o,o+1,o+2,o+3],vK,pre(regs,[odd]*4,mts))
            for z in range(2):
                a(f"buffer_store_dwordx2 {vr(o+2*z,2)}, v{HO2}, {S(sH)}, s66 offen offset:{(2*mp_+z)*1024} {hst}")
                a(f"ds_write_b64 v{HO2}, {vr(o+2*z,2)} offset:{3*8192+(2*mp_+z)*1024}")
        if wn==0: a("s_branch L_epdone")
    a("L_epdone:")
    a(f"s_lshl_b32 s70, s{sI}, 1", f"s_add_u32 s70, s70, s{sS}", "s_lshl_b32 s70, s70, 7", f"s_lshl_b32 s71, s{sN}, 4", "s_add_u32 s70, s70, s71",
      "s_lshl_b32 s71, s3, 2", "s_add_u32 s70, s70, s71", f"s_add_u32 s70, s70, {O_HF}", f"v_mov_b32 v{JK+2}, 1", f"v_mov_b32 v{JK+3}, 0")
    P.stamp(4)
    a("s_waitcnt lgkmcnt(0)", "s_barrier")
    P.stamp(5)
    H=[64,96]; W2=[80,112]
    def reads2(k,set_):
        ua=unitA(k); ub=unitB(k)
        ba=AD2+6*(ua>>16); oa=ua&0xffff; bb=AD2+6*(ub>>16); ob=ub&0xffff
        hr=[]
        for mt in range(4):
            r=H[set_]+4*mt
            if k%7==3: hr+=[f"ds_read_b64 {vr(r+2*z,2)}, v{ba+1} offset:{oa+mt*1024+z*512}" for z in range(2)]
            else: hr.append(f"ds_read_b128 {vr(r,4)}, v{ba} offset:{oa+mt*1024}")
        wr=[f"ds_read_b64_tr_b16 {vr(W2[set_]+4*nt+2*q,2)}, v{bb+2+nt} offset:{ob+q*4096}" for nt in range(4) for q in range(2)]
        return wr[0:2]+hr+wr[2:]
    def mf2(set_,first):
        o=[]
        for nt in range(4):
            for mt in range(4):
                c=(nt*4+mt)*4
                o.append(f"v_mfma_f32_16x16x32_bf16 {vr(c,4)}, {vr(W2[set_]+4*nt,4)}, {vr(H[set_]+4*mt,4)}, "+("0" if first else vr(c,4)))
        return o
    for x in reads2(0,0): a(x)
    for st in range(28):
        a("s_waitcnt lgkmcnt(0)")
        interleave(a, mf2(0,st==0), reads2(2*st+1,1))
        if st==0:
            a("s_waitcnt vmcnt(0)", "s_cmp_eq_u32 s72, 0", "s_cbranch_scc1 L_fl_fast")
            a("buffer_wbl2 sc1", "s_waitcnt vmcnt(0)", f"buffer_store_dword v{JK+2}, v{JK+3}, {S(sWS)}, s70 offen sc1", "s_branch L_fl_done")
            a("L_fl_fast:", f"buffer_store_dword v{JK+2}, v{JK+3}, {S(sWS)}, s70 offen "+("sc1" if hst else ""), "L_fl_done:")
        a("s_waitcnt lgkmcnt(0)")
        if st<27: a("s_barrier")
        if st==3: P.stamp(6)
        if clean is not None and st==clean:
            a("s_cmp_lg_u32 s3, 0", "s_cbranch_scc1 L_noclean", "s_cmp_ge_u32 s2, 8", "s_cbranch_scc1 L_noclean", "buffer_wbl2 sc1", "L_noclean:")
        interleave(a, mf2(1,False), reads2(2*st+2,0) if st<27 else [])
    P.stamp(7)
    a("s_lshl_b32 s63, s2, 15", "s_xor_b32 s64, s2, 1", "s_lshl_b32 s65, s64, 15", "s_add_u32 s66, s63, 4096", "s_add_u32 s67, s65, 4096")
    a("s_lshl_b32 s68, s2, 7", "s_lshl_b32 s69, s64, 7", "s_lshl_b32 s70, s3, 2", f"s_add_u32 s70, s70, {O_XF}", "s_add_u32 s68, s68, s70", "s_add_u32 s69, s69, s70")
    for t in range(8): a(f"buffer_store_dwordx4 {vr(32+4*t,4)}, v{XO}, {S(sWS)}, s{63 if t<4 else 66} offen offset:{(t%4)*1024} sc1")
    BF=112
    for nt in range(2):
        for d in range(2): a(f"v_lshlrev_b32 v{BF+4*nt+2*d}, 16, v{BI+2*nt+d}", f"v_and_b32 v{BF+4*nt+2*d+1}, 0xffff0000, v{BI+2*nt+d}")
    for i in range(16):
        nt=i//8
        a(f"v_pk_add_f32 {vr(2*i,2)}, {vr(2*i,2)}, {vr(BF+4*nt+2*(i%2),2)}")
    a("s_waitcnt vmcnt(0)")
    P.stamp(8)
    a(f"buffer_store_dword v{JK+2}, v{JK+3}, {S(sWS)}, s68 offen sc1", "s_mov_b32 s71, 0")
    a("L_x_poll:", f"buffer_load_dword v{JK}, v{JK+3}, {S(sWS)}, s69 offen sc1", "s_add_u32 s71, s71, 1", "s_waitcnt vmcnt(0)",
      f"v_cmp_ne_u32 vcc, 1, v{JK}", f"s_cmp_ge_u32 s71, {spin}", "s_cbranch_scc1 L_x_go", "s_nop 0", "s_cbranch_vccnz L_x_poll")
    a("L_x_go:")
    P.stamp(9)
    for t in range(8): a(f"buffer_load_dwordx4 {vr(64+4*t,4)}, v{XO}, {S(sWS)}, s{65 if t<4 else 67} offen offset:{(t%4)*1024} sc1")
    for mt in range(4):
        a(f"s_waitcnt vmcnt({3-mt+mt})" if mt else "s_waitcnt vmcnt(3)")
        for nt in range(2):
            c=(nt*4+mt)*4
            a(f"v_pk_add_f32 {vr(c,2)}, {vr(c,2)}, {vr(64+c,2)}", f"v_pk_add_f32 {vr(c+2,2)}, {vr(c+2,2)}, {vr(66+c,2)}")
        o=96+4*mt
        a(f"v_cvt_pk_bf16_f32 v{o}, v{4*mt}, v{4*mt+1}", f"v_cvt_pk_bf16_f32 v{o+1}, v{4*mt+2}, v{4*mt+3}")
        a(f"v_cvt_pk_bf16_f32 v{o+2}, v{16+4*mt}, v{17+4*mt}", f"v_cvt_pk_bf16_f32 v{o+3}, v{18+4*mt}, v{19+4*mt}")
        a(f"s_add_u32 s63, s75, {mt*32768}", "s_nop 0", f"v_permlane16_swap_b32 v{o}, v{o+2}", f"v_permlane16_swap_b32 v{o+1}, v{o+3}")
        a(f"buffer_store_dwordx4 {vr(o,4)}, v{OO}, {S(sOUT)}, s63 offen {outst}")
    if prof:
        P.stamp(10); a("s_waitcnt vmcnt(0)"); P.stamp(11,True); P.flush(12,2)
    a("L_end:", "s_endpgm")
    hdr=["; MLP-Mixer channel MLP in one launch: LayerNorm folded into GEMM1's epilogue, GELU, GEMM2 (split-K 2).",
         "; Generated by the author's own generator script.",
         "; @launch grid=(256,1,1) block=(512,1,1) lds=163840"]
    return header(hdr)+kstart(KN)+a.text()+RODATA+kdesc(KN)
if __name__=="__main__":
    import sys
    open(sys.argv[1],"w").write(gen())
```

```python
from asmlib import *
import struct
KN="standalone__mixer_channel_mlp__prompt_kernel"
M,D,F=2048,1024,3584
WS_H=0; WS_B=16<<20
O_XCH=0; O_ROW=8<<20; O_COL=(8<<20)+65536; O_HF=(8<<20)+(512<<10); O_XF=(8<<20)+(576<<10); O_PROF=16<<20
WSB_SIZE=(18<<20)
PB=155648
P_CS=PB; P_B1=PB+896; P_RS=PB+1792; P_MODE=PB+2816; P_SCR=PB+3072
SLOT=45056
def fbits(x): return "0x%08x"%struct.unpack("<I",struct.pack("<f",x))[0]
K1=-2.0*0.7978845608028654*1.4426950408889634
K2=K1*0.044715
sX,sW1,sW2,sH,sOUT,sWS,sB1,sB2,sDBG=20,24,28,32,36,40,44,48,52
sI,sN,sS,sJ=56,57,58,59
PROFB=76
def S(d): return f"s[{d}:{d+3}]"
def srd(a, d, p, off, size):
    if off: a(f"s_add_u32 s{d}, s{p}, {off}", f"s_addc_u32 s{d+1}, s{p+1}, 0")
    else: a(f"s_mov_b32 s{d}, s{p}", f"s_mov_b32 s{d+1}, s{p+1}")
    a(f"s_mov_b32 s{d+2}, {size}", f"s_mov_b32 s{d+3}, 0x20000")
def rbf(a, v): a(f"v_cvt_pk_bf16_f32 v{v}, v{v}, v{v}", f"v_and_b32 v{v}, 0xffff0000, v{v}")
def vr(r,n): return f"v[{r}:{r+n-1}]"

class Prof:
    def __init__(s, a, on): s.a=a; s.on=on; s.pend=[]; s.names={}; s.role=None; s.cnt=0; s.k=0
    def begin(s, role, first):
        s.role=role; s.cnt=first; s.names.setdefault(role,{})
    def mark(s, name, defer=False, real=False):
        if not s.on: return
        idx=s.cnt; s.cnt+=1; assert idx<128
        s.names[s.role][idx]=name
        r=PROFB+2*(s.k%8); s.k+=1
        s.a(f"s_memrealtime s[{r}:{r+1}]" if real else f"s_memtime s[{r}:{r+1}]")
        s.pend.append((idx,r))
        if not defer: s.a("s_waitcnt lgkmcnt(0)"); s.commit()
    def commit(s):
        for idx,r in s.pend: s.a(f"v_writelane_b32 v{252+idx//64}, s{r}, {idx%64}")
        s.pend=[]
    def flush(s, v):
        if not s.on: return
        a=s.a
        a("s_waitcnt lgkmcnt(0)"); s.commit()
        a("s_lshl_b32 s60, s2, 3", "s_add_u32 s60, s60, s3", "s_lshl_b32 s60, s60, 9", f"s_add_u32 s60, s60, {O_PROF}", f"v_lshlrev_b32 v{v}, 2, v254")
        a(f"buffer_store_dword v252, v{v}, {S(sWS)}, s60 offen", f"buffer_store_dword v253, v{v}, {S(sWS)}, s60 offen offset:256")
        a("s_waitcnt vmcnt(0)")

def interleave(a, mf, others, start=0):
    o=list(others)
    for i,m in enumerate(mf):
        a(m)
        if i>=start and o: a(o.pop(0))
    for x in o: a(x)

def gelu_group(a, regs, T, outs, vK, pre):
    n=len(regs); pr=lambda r:vr(r,2)
    for x in pre: a(x)
    for i,r in enumerate(regs): a(f"v_pk_mul_f32 {pr(T+2*i)}, {pr(r)}, {pr(r)}")
    for i,r in enumerate(regs): a(f"v_pk_fma_f32 {pr(T+2*i)}, {pr(T+2*i)}, {pr(vK)}, {pr(vK)} op_sel:[0,1,0] op_sel_hi:[1,1,0]")
    for i,r in enumerate(regs): a(f"v_pk_mul_f32 {pr(T+2*i)}, {pr(T+2*i)}, {pr(r)}")
    for i in range(2*n): a(f"v_exp_f32 v{T+i}, v{T+i}")
    for i,r in enumerate(regs): a(f"v_pk_add_f32 {pr(T+2*i)}, {pr(T+2*i)}, 1.0 op_sel_hi:[1,0]")
    for i in range(2*n): a(f"v_rcp_f32 v{T+i}, v{T+i}")
    for i,r in enumerate(regs): a(f"v_pk_mul_f32 {pr(T+2*i)}, {pr(T+2*i)}, {pr(r)}")
    for i,r in enumerate(regs): a(f"v_cvt_pk_bf16_f32 v{outs[i]}, v{T+2*i}, v{T+2*i+1}")

def gen(prof=False, NB=10, prio=1, w2_touch=6, row0=2, col0=5, force_slow=False, hst="", clean=None, korder="rot",
        ld1="", ld2a="", ld2b="", svld="", spin=0x20000, outst=""):
    a=Asm(); P=Prof(a,prof)
    NA=20-NB
    L=254
    unitB=lambda k: (7+(k%NB))*8192
    aring=list(range(7))+list(range(7+NB,20))
    unitA=lambda k: aring[k%NA]*8192
    a("s_cmp_ge_u32 s2, 256", "s_cbranch_scc1 L_end")
    if prof: a("s_memrealtime s[92:93]", "s_memtime s[94:95]")
    a("s_load_dwordx16 s[4:19], s[0:1], 0")
    def entry_commit():
        if prof: a("v_mov_b32 v252, 0", "v_mov_b32 v253, 0", "v_writelane_b32 v252, s92, 0", "v_writelane_b32 v252, s94, 1")
    def bar(name, defer=False):
        if not defer: P.mark(name+"<")
        a("s_barrier"); P.mark(name+">", defer=defer)
    a("v_lshrrev_b32 v1, 6, v0", f"v_and_b32 v{L}, 63, v0", "v_readfirstlane_b32 s3, v1")
    a(f"s_and_b32 s{sS}, s2, 1", f"s_lshr_b32 s{sI}, s2, 1", f"s_and_b32 s{sI}, s{sI}, 3", f"s_lshl_b32 s{sI}, s{sI}, 2",
      "s_lshr_b32 s60, s2, 6", f"s_add_u32 s{sI}, s{sI}, s60", f"s_lshr_b32 s{sN}, s2, 3", f"s_and_b32 s{sN}, s{sN}, 7",
      f"s_lshl_b32 s{sJ}, s{sS}, 3", f"s_add_u32 s{sJ}, s{sJ}, s{sN}")
    a("s_cmp_lt_u32 s3, 4", "s_cbranch_scc1 L_compute", "s_cmp_ge_u32 s3, 6", "s_cbranch_scc1 L_service")
    VA=8; VB=16
    a("s_and_b32 s61, s3, 1")
    a(f"v_lshrrev_b32 v1, 3, v{L}", f"v_and_b32 v2, 7, v{L}", "v_xor_b32 v2, v2, v1", "v_lshlrev_b32 v2, 4, v2", "v_lshl_add_u32 v2, v1, 11, v2")
    a(f"s_lshl_b32 s62, s{sI}, 18", "s_lshl_b32 s63, s61, 17", "s_add_u32 s62, s62, s63")
    for t in range(8): a(f"s_add_u32 s63, s62, {t*16384-(t%4)*1024}", f"v_add_u32 v{VA+t}, s63, v2")
    a("s_mul_i32 s62, s61, 229376", f"s_mul_i32 s63, s{sJ}, 448", "s_add_u32 s62, s62, s63")
    for t in range(7):
        a(f"v_add_u32 v1, {64*t}, v{L}", "v_mul_u32_u24 v2, 2341, v1", "v_lshrrev_b32 v2, 16, v2")
        a("v_mul_u32_u24 v3, 28, v2", "v_sub_u32 v3, v1, v3")
        a("v_lshrrev_b32 v4, 2, v2", "v_and_b32 v4, 2, v4", "v_xor_b32 v3, v3, v4")
        a("v_mul_u32_u24 v2, 7168, v2", "v_lshl_add_u32 v2, v3, 4, v2", "v_add_u32 v2, s62, v2")
        if t%4: a(f"v_subrev_u32 v{VB+t}, {(t%4)*1024}, v2")
        else: a(f"v_mov_b32 v{VB+t}, v2")
        a(f"v_add_u32 v{VB+7+t}, {114688-((t+7)%4)*1024}, v2")
    a("s_lshl_b32 s64, s61, 13", "s_mul_i32 s65, s61, 14336", "s_add_u32 s65, s65, 16384")
    a("s_waitcnt lgkmcnt(0)")
    entry_commit(); P.begin("dma",2); P.mark("karg")
    srd(a,sX,4,0,M*D*2); srd(a,sW1,6,0,D*F*2)
    def issue1(st):
        sl=(st%3)*SLOT
        a(f"s_mov_b32 s66, {st*128}", f"s_mov_b32 s67, {st*458752}")
        seq=[("B",0),("A",0),("B",1),("A",1),("B",2),("B",3)]
        for kind,g in seq:
            if kind=="A":
                a(f"s_add_u32 m0, s64, {sl+g*4096}", "s_nop 0")
                for t in range(4*g,4*g+4): a(f"buffer_load_dwordx4 v{VA+t}, {S(sX)}, s66 offen offset:{(t%4)*1024} {ld1} lds")
            else:
                a(f"s_add_u32 m0, s65, {sl+g*4096}", "s_nop 0")
                for t in range(4*g,min(14,4*g+4)): a(f"buffer_load_dwordx4 v{VB+t}, {S(sW1)}, s67 offen offset:{(t%4)*1024} {ld1} lds")
    issue1(0); P.mark("iss0"); issue1(1); P.mark("iss1")
    srd(a,sW2,10,0,D*F*2); srd(a,sH,18,WS_H,M*F*2); srd(a,sWS,18,WS_B,WSB_SIZE)
    a("s_waitcnt vmcnt(22)"); bar("B0")
    issue1(2)
    for st in range(13):
        a("s_waitcnt vmcnt(22)"); bar(f"m{st}"); issue1(st+3)
    a("s_waitcnt vmcnt(22)"); bar("m13")
    a("s_waitcnt vmcnt(0)"); bar("m14")
    a("s_mov_b32 s61, 0", "s_cmp_eq_u32 s3, 4", "s_cbranch_scc1 L_streamA", "s_branch L_streamB")
    a("L_service:")
    a("s_and_b32 s61, s3, 1")
    RL=8; CL=40; AC=104
    a(f"v_lshrrev_b32 v1, 4, v{L}", f"v_and_b32 v2, 15, v{L}", "v_lshlrev_b32 v2, 4, v2", "v_lshl_add_u32 v2, v1, 11, v2")
    a(f"s_lshl_b32 s62, s{sI}, 7", f"s_lshl_b32 s63, s{sJ}, 3", "s_add_u32 s62, s62, s63", "s_lshl_b32 s63, s61, 2", "s_add_u32 s62, s62, s63")
    a("s_lshl_b32 s64, s62, 11")
    a("s_lshl_b32 s65, s62, 3", f"s_add_u32 s65, s65, {O_ROW}", "v_lshlrev_b32 v3, 3, v1")
    a(f"v_lshrrev_b32 v4, 5, v{L}", f"v_and_b32 v5, 31, v{L}", "v_min_u32 v5, 27, v5", "v_mul_u32_u24 v6, 7168, v4", "v_lshl_add_u32 v6, v5, 4, v6")
    a(f"s_lshl_b32 s66, s{sI}, 1", "s_add_u32 s66, s66, s61", "s_mul_i32 s66, s66, 229376", f"s_mul_i32 s67, s{sJ}, 448", "s_add_u32 s66, s66, s67")
    a("v_lshlrev_b32 v7, 5, v5", "v_lshl_add_u32 v7, v4, 4, v7")
    a(f"s_lshl_b32 s68, s{sJ}, 4", f"s_add_u32 s69, s68, s{sI}", "s_mul_i32 s69, s69, 896", f"s_add_u32 s69, s69, {O_COL}")
    a("s_mul_i32 s68, s68, 896", f"s_add_u32 s68, s68, {O_COL}")
    for r in range(4): a(f"v_mov_b32 v{112+r}, -1")
    a("v_mov_b32 v116, 0", f"v_and_b32 v117, 3, v{L}", "v_lshlrev_b32 v117, 2, v117")
    a("s_waitcnt lgkmcnt(0)")
    entry_commit(); P.begin("svc",2); P.mark("karg"); P.mark("-"); P.mark("-")
    srd(a,sX,4,0,M*D*2); srd(a,sW1,6,0,D*F*2); srd(a,sWS,18,WS_B,WSB_SIZE)
    a(f"buffer_store_dwordx2 v[112:113], v3, {S(sWS)}, s65 offen sc1")
    a("s_cmp_eq_u32 s61, 0", "s_cbranch_scc1 L_sv_r0")
    a(f"buffer_store_dwordx4 v[112:115], v7, {S(sWS)}, s69 offen sc1", "s_branch L_sv_r1")
    a("L_sv_r0:")
    a(f"s_lshl_b32 s70, s{sI}, 1", f"s_add_u32 s70, s70, s{sS}", "s_lshl_b32 s70, s70, 7", f"s_lshl_b32 s71, s{sN}, 4", "s_add_u32 s70, s70, s71", f"s_add_u32 s70, s70, {O_HF}")
    a(f"buffer_store_dword v116, v117, {S(sWS)}, s70 offen sc1")
    a("s_lshl_b32 s70, s2, 7", f"s_add_u32 s70, s70, {O_XF}")
    a(f"buffer_store_dword v116, v117, {S(sWS)}, s70 offen sc1")
    a("L_sv_r1:")
    for t in range(8): a(f"buffer_load_dwordx4 {vr(RL+4*t,4)}, v2, {S(sX)}, s64 offen offset:{t*256} {svld}")
    for t in range(16): a(f"s_add_u32 s70, s66, {t*14336}", f"buffer_load_dwordx4 {vr(CL+4*t,4)}, v6, {S(sW1)}, s70 offen {svld}")
    srd(a,sW2,10,0,D*F*2); srd(a,sH,18,WS_H,M*F*2); srd(a,sB1,8,0,F*2); srd(a,sDBG,16,0,256)
    work={b:[] for b in range(-1,15)}
    SM,SQ=120,124
    rows=[]
    for d in range(32):
        r=RL+d; k=d%4
        rows+=[f"v_lshlrev_b32 v118, 16, v{r}", f"v_and_b32 v119, 0xffff0000, v{r}"]
        if d<4: rows+=[f"v_add_f32 v{SM+k}, v118, v119", f"v_mul_f32 v{SQ+k}, v118, v118", f"v_fmac_f32 v{SQ+k}, v119, v119"]
        else: rows+=[f"v_add_f32 v{SM+k}, v{SM+k}, v118", f"v_fmac_f32 v{SQ+k}, v118, v118", f"v_add_f32 v{SM+k}, v{SM+k}, v119", f"v_fmac_f32 v{SQ+k}, v119, v119"]
    half=len(rows)//2//6*6
    work[row0]+=["s_waitcnt vmcnt(16)"]+rows[:half]
    flag=Asm()
    flag("s_cmp_eq_u32 s61, 0", "s_cbranch_scc0 L_sv_nf", "s_getreg_b32 s70, hwreg(HW_REG_XCC_ID, 0, 4)", "s_or_b32 s70, s70, 0x80",
         "v_mov_b32 v128, s70", "v_mov_b32 v129, s2", f"buffer_store_byte v128, v129, {S(sDBG)}, 0 offen sc1", "L_sv_nf:")
    work[row0+1]+=flag.L+rows[half:]
    fin=Asm()
    fin(f"v_add_f32 v{SM}, v{SM}, v{SM+1}", f"v_add_f32 v{SM+2}, v{SM+2}, v{SM+3}", f"v_add_f32 v{SQ}, v{SQ}, v{SQ+1}", f"v_add_f32 v{SQ+2}, v{SQ+2}, v{SQ+3}",
        f"v_add_f32 v{SM}, v{SM}, v{SM+2}", f"v_add_f32 v{SQ}, v{SQ}, v{SQ+2}")
    for m in ["quad_perm:[1,0,3,2]","quad_perm:[2,3,0,1]","row_half_mirror","row_mirror"]:
        fin("s_nop 1", f"v_add_f32_dpp v{SM}, v{SM}, v{SM} {m} row_mask:0xf bank_mask:0xf", f"v_add_f32_dpp v{SQ}, v{SQ}, v{SQ} {m} row_mask:0xf bank_mask:0xf")
    fin(f"v_mul_f32 v{SM}, {fbits(1/1024)}, v{SM}", f"v_mul_f32 v{SQ}, {fbits(1/1024)}, v{SQ}", f"v_fma_f32 v{SQ}, -v{SM}, v{SM}, v{SQ}", f"v_max_f32 v{SQ}, 0, v{SQ}")
    rbf(fin,SM); rbf(fin,SQ)
    fin(f"v_add_f32 v{SQ}, {fbits(1e-5)}, v{SQ}"); rbf(fin,SQ)
    fin(f"v_sqrt_f32 v{SQ}, v{SQ}", "s_nop 0"); rbf(fin,SQ)
    fin(f"v_rcp_f32 v130, v{SQ}", "s_nop 0", f"v_mul_f32 v131, -v{SM}, v130")
    fin(f"buffer_store_dwordx2 v[130:131], v3, {S(sWS)}, s65 offen sc1")
    work[row0+2]+=fin.L
    cols=[]
    for t in range(16):
        for d in range(4):
            r=CL+4*t+d
            if t==0: cols+=[f"v_lshlrev_b32 v{AC+2*d}, 16, v{r}", f"v_and_b32 v{AC+2*d+1}, 0xffff0000, v{r}"]
            else: cols+=[f"v_lshlrev_b32 v118, 16, v{r}", f"v_and_b32 v119, 0xffff0000, v{r}", f"v_add_f32 v{AC+2*d}, v{AC+2*d}, v118", f"v_add_f32 v{AC+2*d+1}, v{AC+2*d+1}, v119"]
    c1=8+4*23; c2=c1+4*24
    work[col0]+=["s_waitcnt vmcnt(1)"]+cols[:c1]
    work[col0+1]+=cols[c1:c2]
    red=Asm()
    for e in range(8): red(f"v_mov_b32 v{132+e}, v{AC+e}")
    for e in range(8): red(f"v_permlane32_swap_b32 v{132+e}, v{AC+e}")
    red("s_nop 0")
    for e in range(8): red(f"v_add_f32 v{AC+e}, v{AC+e}, v{132+e}")
    red(f"v_cmp_lt_u32 vcc, 31, v{L}", "s_nop 1")
    for e in range(4): red(f"v_cndmask_b32 v{132+e}, v{AC+e}, v{AC+4+e}, vcc")
    red(f"v_add_u32 v136, {P_SCR}, v7")
    red("s_cmp_eq_u32 s61, 0", "s_cbranch_scc0 L_sv_nw", "ds_write_b128 v136, v[132:135]", "s_waitcnt lgkmcnt(0)", "L_sv_nw:")
    work[col0+2]+=cols[c2:]+red.L
    w=Asm()
    w(f"v_lshlrev_b32 v137, 2, v{L}", "s_cmp_eq_u32 s61, 0", "s_cbranch_scc1 L_sv_p0")
    w("ds_read_b128 v[140:143], v136", "s_waitcnt lgkmcnt(0)")
    for e in range(4): w(f"v_add_f32 v{132+e}, v{132+e}, v{140+e}")
    w(f"buffer_store_dwordx4 v[132:135], v7, {S(sWS)}, s69 offen sc1", "s_branch L_sv_p1")
    w("L_sv_p0:")
    w(f"buffer_load_dword v138, v137, {S(sDBG)}, 0 offen sc1")
    w("L_sv_p1:")
    work[col0+3]+=w.L
    w=Asm()
    w("s_cmp_eq_u32 s61, 0", "s_cbranch_scc0 L_sv_c1", "s_mov_b32 s70, 0", "s_mov_b32 s71, 0x80808080")
    w("L_sv_c0:", "s_waitcnt vmcnt(0)", "v_and_b32 v139, s71, v138", "v_cmp_ne_u32 vcc, s71, v139", "s_add_u32 s70, s70, 1", "s_nop 1",
      "s_cbranch_vccz L_sv_c2", f"s_cmp_ge_u32 s70, {spin}", "s_cbranch_scc1 L_sv_c2",
      f"buffer_load_dword v138, v137, {S(sDBG)}, 0 offen sc1", "s_branch L_sv_c0")
    w("L_sv_c2:")
    w("v_readlane_b32 s72, v138, 0", "v_readlane_b32 s73, v138, 1", f"v_and_b32 v139, 1, v{L}", "v_cmp_eq_u32 vcc, 1, v139", "v_mov_b32 v140, s72", "v_mov_b32 v141, s73",
      "s_nop 1", "v_cndmask_b32 v140, v140, v141, vcc", "v_cmp_ne_u32 vcc, v140, v138", "s_nop 1", "s_cmp_lg_u64 vcc, 0", "s_cselect_b32 s72, 1, %d"%(1 if force_slow else 0),
      "v_mov_b32 v140, s72", f"v_mov_b32 v141, {P_MODE}", "ds_write_b32 v141, v140", "s_waitcnt lgkmcnt(0)")
    w("L_sv_c1:")
    work[col0+4]+=w.L
    G0=col0+5
    w=Asm()
    w(f"v_min_u32 v144, 55, v{L}", "s_mov_b32 s70, 0")
    w("v_lshlrev_b32 v145, 4, v144")
    for g in range(1,4): w(f"v_add_u32 v{145+g}, {3584*g}, v145")
    w("s_cmp_eq_u32 s61, 0", "s_cbranch_scc1 L_sv_g0")
    def colloads(w):
        for ii in range(16): w(f"buffer_load_dwordx4 {vr(CL+4*ii,4)}, v{145+ii//4}, {S(sWS)}, s68 offen offset:{(ii%4)*896} sc1")
    colloads(w)
    w("s_branch L_sv_g1")
    w("L_sv_g0:")
    w(f"s_lshl_b32 s71, s{sI}, 10", f"s_add_u32 s71, s71, {O_ROW}", f"v_lshlrev_b32 v145, 4, v{L}", "v_lshlrev_b32 v146, 3, v144", f"s_mul_i32 s72, s{sJ}, 448")
    w(f"buffer_load_dwordx2 v[12:13], v146, {S(sB1)}, s72 offen", f"buffer_load_dwordx4 v[8:11], v145, {S(sWS)}, s71 offen sc1")
    w("L_sv_g1:")
    work[G0]+=w.L
    w=Asm()
    w("s_cmp_eq_u32 s61, 0", "s_cbranch_scc1 L_sv_h0")
    w("L_sv_h2:", "s_waitcnt vmcnt(0)")
    for e in range(4): w(f"v_add_f32 v{132+e}, v{CL+e}, v{CL+4+e}")
    for ii in range(2,16):
        for e in range(4): w(f"v_add_f32 v{132+e}, v{132+e}, v{CL+4*ii+e}")
    w("v_cmp_u_f32 vcc, v132, v133", "v_cmp_u_f32 s[72:73], v134, v135", "s_add_u32 s70, s70, 1", "s_nop 1", "s_or_b64 vcc, vcc, s[72:73]",
      "s_cbranch_scc0 L_sv_h3", f"s_cmp_ge_u32 s70, {spin//16}", "s_cbranch_scc1 L_sv_h3")
    colloads(w)
    w("s_branch L_sv_h2")
    w("L_sv_h3:", f"v_add_u32 v145, {P_CS}, v145", "ds_write_b128 v145, v[132:135]", "s_waitcnt lgkmcnt(0)", "s_branch L_sv_h1")
    w("L_sv_h0:", "s_waitcnt vmcnt(0)")
    w("v_cmp_u_f32 vcc, v8, v9", "v_cmp_u_f32 s[72:73], v10, v11", "s_add_u32 s70, s70, 1", "s_nop 1", "s_or_b64 vcc, vcc, s[72:73]",
      "s_cbranch_scc0 L_sv_h4", f"s_cmp_ge_u32 s70, {spin//16}", "s_cbranch_scc1 L_sv_h4",
      f"buffer_load_dwordx4 v[8:11], v145, {S(sWS)}, s71 offen sc1", "s_branch L_sv_h0")
    w("L_sv_h4:", f"v_add_u32 v145, {P_RS}, v145", "ds_write_b128 v145, v[8:11]")
    w("v_lshlrev_b32 v16, 16, v12", "v_and_b32 v17, 0xffff0000, v12", "v_lshlrev_b32 v18, 16, v13", "v_and_b32 v19, 0xffff0000, v13")
    w(f"v_lshlrev_b32 v146, 4, v144", f"v_add_u32 v146, {P_B1}, v146", "ds_write_b128 v146, v[16:19]", "s_waitcnt lgkmcnt(0)")
    w("L_sv_h1:")
    work[G0+2]+=w.L
    assert G0+2<=14
    for b in range(-1,15):
        bar("B0" if b<0 else f"m{b}")
        for x in work[b]: a(x)
    a("s_mov_b32 s61, 1", "s_cmp_eq_u32 s3, 6", "s_cbranch_scc1 L_streamA")
    def tile_sgpr(p, dst):
        if korder=="rot": a(f"s_add_u32 s{dst}, s{sN}, {p}", f"s_and_b32 s{dst}, s{dst}, 7")
        else:
            if p==0: a(f"s_mov_b32 s{dst}, s{sN}")
            else: a(f"s_cmp_gt_u32 s{sN}, {p-1}", f"s_cselect_b32 s{dst}, {p-1}, {p}")
        a(f"s_lshl_b32 s60, s{sS}, 3", f"s_add_u32 s{dst}, s{dst}, s60")
    a("L_streamB:"); P.begin("sB",40)
    VB2=8
    a("s_lshl_b32 s62, s61, 15", f"s_lshl_b32 s63, s{sN}, 8", "s_add_u32 s62, s62, s63", "s_lshl_b32 s64, s61, 12")
    for t in range(4):
        a(f"v_lshrrev_b32 v1, 4, v{L}", f"v_add_u32 v1, {4*t}, v1", "v_and_b32 v2, 7, v1", "v_lshlrev_b32 v2, 1, v2", f"v_and_b32 v3, 15, v{L}", "v_xor_b32 v2, v2, v3")
        a("v_lshlrev_b32 v1, 11, v1", "v_lshl_add_u32 v1, v2, 4, v1", f"s_sub_u32 s63, s62, {t*1024}", f"v_add_u32 v{VB2+t}, s63, v1")
    def issueB(k):
        if k%7==0: tile_sgpr(k//7,65); a("s_mul_i32 s65, s65, 458752")
        a(f"s_add_u32 s66, s65, {(k%7)*65536}", f"s_add_u32 m0, s64, {unitB(k)}", "s_nop 0")
        for t in range(4): a(f"buffer_load_dwordx4 v{VB2+t}, {S(sW2)}, s66 offen offset:{t*1024} {ld2b} lds")
    for k in range(NB): issueB(k)
    bar("m15")
    a(f"s_waitcnt vmcnt({4*(NB-2)})"); bar("E")
    nxt=NB
    for b in range(27):
        a(f"s_waitcnt vmcnt({4*(nxt-(2*b+4))})"); bar(f"g{b}")
        for k in (2*b+NB,2*b+NB+1):
            if k<56: issueB(k); nxt=k+1
    P.flush(2)
    a("s_endpgm")
    a("L_streamA:"); P.begin("sA",40)
    a("s_lshl_b32 s64, s61, 12", f"v_lshlrev_b32 v1, 4, v{L}", "v_add_u32 v8, s64, v1")
    a(f"s_mul_i32 s62, s{sI}, {112*8192}")
    a(f"s_lshl_b32 s70, s{sI}, 1", f"s_add_u32 s70, s70, s{sS}", "s_lshl_b32 s70, s70, 7", f"s_add_u32 s70, s70, {O_HF}")
    a(f"v_and_b32 v9, 31, v{L}", "v_lshlrev_b32 v9, 2, v9", f"v_mov_b32 v10, {P_MODE}")
    bar("m15")
    a("ds_read_b32 v11, v10", "s_waitcnt lgkmcnt(0)", "v_readfirstlane_b32 s72, v11")
    bar("E")
    bar("g0")
    a("s_mov_b32 s71, 0")
    a("L_a_poll:", f"buffer_load_dword v11, v9, {S(sWS)}, s70 offen sc1", "s_add_u32 s71, s71, 1", "s_waitcnt vmcnt(0)",
      "v_cmp_ne_u32 vcc, 1, v11", f"s_cmp_ge_u32 s71, {spin}", "s_cbranch_scc1 L_a_go", "s_nop 0", "s_cbranch_vccnz L_a_poll")
    a("L_a_go:")
    a("s_cmp_eq_u32 s72, 0", "s_cbranch_scc1 L_a_fast", "buffer_inv sc1", "s_waitcnt vmcnt(0)", "L_a_fast:")
    P.mark("polled")
    def issueA(k):
        if k%7==0: tile_sgpr(k//7,65); a("s_mul_i32 s65, s65, 57344", "s_add_u32 s65, s65, s62")
        a(f"s_add_u32 s66, s65, {(k%7)*8192}", f"s_add_u32 m0, s64, {unitA(k)}", "s_nop 0")
        for t in range(4): a(f"buffer_load_dwordx4 v8, {S(sH)}, s66 offen offset:{t*1024} {ld2a} lds")
    for k in range(7,NA+2): issueA(k)
    nxt=NA+2
    for b in range(1,27):
        need=2*b+4
        if need>7: a(f"s_waitcnt vmcnt({4*(nxt-need)})")
        bar(f"g{b}")
        for k in (2*b+NA,2*b+NA+1):
            if k<56: issueA(k); nxt=k+1
    P.flush(2)
    a("s_endpgm")
    a("L_compute:")
    X=[112,156]; W=[128,172]; AD=200; AD2=212; HO=230; HO2=231; vK=232; OO=234; XO=235; PA=236; PR=237; TW=238; BI=240; JK=244
    a("s_lshr_b32 s61, s3, 1", "s_and_b32 s62, s3, 1")
    a(f"v_and_b32 v1, 15, v{L}", f"v_lshrrev_b32 v2, 4, v{L}")
    a("s_lshl_b32 s63, s61, 13", "v_lshlrev_b32 v3, 7, v1", "v_add_u32 v3, s63, v3")
    a("v_and_b32 v4, 7, v1", "v_xor_b32 v4, v4, v2", f"v_lshl_add_u32 v{AD}, v4, 4, v3", f"v_xor_b32 v{AD+1}, 64, v{AD}")
    a("v_lshrrev_b32 v3, 2, v1", "v_lshl_add_u32 v3, v2, 3, v3", "v_mul_u32_u24 v3, 448, v3")
    a("v_and_b32 v4, 3, v1", "v_lshl_add_u32 v3, v4, 3, v3", "s_mul_i32 s63, s62, 224", "v_add_u32 v3, s63, v3")
    a("v_and_b32 v4, 1, v2", "v_lshlrev_b32 v4, 5, v4")
    a("s_cmp_eq_u32 s62, 0", "s_cselect_b32 s63, 1, -1", "v_mul_lo_u32 v4, s63, v4")
    a(f"v_add_u32 v{AD+2}, v3, v4", f"v_sub_u32 v{AD+3}, v3, v4")
    for s in (1,2):
        for r in range(4): a(f"v_add_u32 v{AD+4*s+r}, {SLOT*s}, v{AD+r}")
    a("s_lshl_b32 s63, s61, 12", f"v_lshlrev_b32 v{HO}, 4, v{L}", f"v_add_u32 v{HO}, s63, v{HO}")
    a(f"v_lshlrev_b32 v{AD2+1}, 3, v{L}", f"v_add_u32 v{AD2+1}, s63, v{AD2+1}", f"v_mov_b32 v{AD2}, v{HO}")
    a("s_lshl_b32 s63, s62, 9", f"v_add_u32 v{HO2}, s63, v{AD2+1}")
    a(f"v_mov_b32 v{vK}, {fbits(K1)}", f"v_mov_b32 v{vK+1}, {fbits(K2)}")
    a("v_lshrrev_b32 v3, 2, v1", "v_lshl_add_u32 v3, v2, 2, v3")
    a("v_and_b32 v4, 7, v3", "v_lshlrev_b32 v3, 8, v3", "v_and_b32 v5, 3, v1", "v_lshl_add_u32 v3, v5, 3, v3")
    a("s_lshl_b32 s63, s62, 2", f"s_lshl_b32 s64, s{sS}, 1", "s_add_u32 s63, s63, s64")
    for nt in range(4): a(f"s_xor_b32 s64, s63, {nt}", "v_xor_b32 v5, s64, v4", f"v_lshl_add_u32 v{AD2+2+nt}, v5, 5, v3")
    for cp in (1,2):
        for r in range(6): a(f"v_add_u32 v{AD2+6*cp+r}, {65536*cp}, v{AD2+r}")
    a(f"s_lshl_b32 s64, s{sN}, 8", "s_lshl_b32 s65, s63, 5", "s_add_u32 s74, s64, s65")
    a("v_lshlrev_b32 v3, 11, v1", "v_and_b32 v4, 1, v2", "v_lshl_add_u32 v3, v4, 5, v3", "v_lshrrev_b32 v4, 1, v2", f"v_lshl_add_u32 v{OO}, v4, 4, v3")
    a(f"s_lshl_b32 s64, s{sI}, 18", "s_lshl_b32 s65, s61, 17", "s_add_u32 s64, s64, s65", "s_add_u32 s75, s64, s74")
    a("s_lshl_b32 s64, s3, 13", f"v_lshlrev_b32 v3, 4, v{L}", f"v_add_u32 v{XO}, s64, v3")
    a("s_mul_i32 s64, s62, 448", f"s_add_u32 s64, s64, {P_CS}", "v_lshlrev_b32 v3, 4, v2", f"v_add_u32 v{PA}, s64, v3")
    a("s_lshl_b32 s64, s61, 9", f"s_add_u32 s64, s64, {P_RS}", "v_lshlrev_b32 v3, 3, v1", f"v_add_u32 v{PR}, s64, v3")
    a(f"v_min_u32 v3, 55, v{L}", f"v_lshlrev_b32 v{TW}, 7, v3", "s_lshl_b32 s64, s2, 2", "s_add_u32 s64, s64, s3", "s_mul_i32 s73, s64, 7168")
    a("v_lshlrev_b32 v3, 3, v2")
    a("s_waitcnt lgkmcnt(0)")
    entry_commit(); P.begin("cmp",2); P.mark("karg")
    srd(a,sW2,10,0,D*F*2); srd(a,sH,18,WS_H,M*F*2); srd(a,sWS,18,WS_B,WSB_SIZE); srd(a,sOUT,14,0,M*D*2); srd(a,sB2,12,0,D*2)
    for nt in range(2): a(f"buffer_load_dwordx2 {vr(BI+2*nt,2)}, v3, {S(sB2)}, s74 offen offset:{nt*32}")
    if w2_touch==-1: a(f"buffer_load_dword v{JK}, v{TW}, {S(sW2)}, s73 offen")
    if prio: a(f"s_setprio {prio}")
    def reads1(st,h,set_):
        b=AD+4*(st%3)
        xr=[f"ds_read_b128 {vr(X[set_]+4*mt,4)}, v{b+h} offset:{mt*2048}" for mt in range(4)]
        wr=[f"ds_read_b64_tr_b16 {vr(W[set_]+4*nt+2*q,2)}, v{b+2+(nt&1)} offset:{16384+h*14336+q*1792+nt*32}" for nt in range(7) for q in range(2)]
        return wr[0:2]+xr+wr[2:]
    def mf1(set_,first):
        o=[]
        for nt in range(7):
            for mt in range(4):
                c=(mt*7+nt)*4
                o.append(f"v_mfma_f32_16x16x32_bf16 {vr(c,4)}, {vr(W[set_]+4*nt,4)}, {vr(X[set_]+4*mt,4)}, "+("0" if first else vr(c,4)))
        return o
    CS=112; B1=140; RS=200
    bar("B0",True)
    for x in reads1(0,0,0): a(x)
    for st in range(16):
        a("s_waitcnt lgkmcnt(0)"); P.commit()
        extra=[f"buffer_load_dword v{JK}, v{TW}, {S(sW2)}, s73 offen"] if st==w2_touch else []
        interleave(a, mf1(0,st==0), reads1(st,1,1)+extra)
        a("s_waitcnt lgkmcnt(0)"); bar(f"m{st}",True)
        if st<15: interleave(a, mf1(1,False), reads1(st+1,0,0))
        else:
            pr=[f"ds_read_b64 {vr(RS+2*mt,2)}, v{PR} offset:{mt*128}" for mt in range(4)]
            pr+=[f"ds_read_b128 {vr(CS+4*nt,4)}, v{PA} offset:{nt*64}" for nt in range(7)]
            pr+=[f"ds_read_b128 {vr(B1+4*nt,4)}, v{PA} offset:{896+nt*64}" for nt in range(4)]
            pr+=[f"v_mov_b32 v{JK+1}, {P_MODE}", f"ds_read_b32 v{JK+1}, v{JK+1}"]
            interleave(a, mf1(1,False), pr)
    for nt in range(4,7): a(f"ds_read_b128 {vr(B1+4*nt,4)}, v{PA} offset:{896+nt*64}")
    P.mark("G1end",True)
    a(f"s_mul_i32 s63, s{sI}, 112", f"s_mul_i32 s64, s{sJ}, 7", "s_add_u32 s63, s63, s64", "s_lshl_b32 s63, s63, 13")
    a("s_add_u32 s66, s63, 24576", "s_lshl_b32 s64, s62, 15", "s_add_u32 s63, s63, s64", "s_add_u32 s64, s63, 8192", "s_add_u32 s65, s63, 16384")
    a("s_waitcnt lgkmcnt(0)", f"v_readfirstlane_b32 s72, v{JK+1}"); P.commit()
    a("s_cmp_eq_u32 s62, 0", "s_cbranch_scc0 L_ep1")
    T=168; OUT=[176,180,184,188]
    def pre(regs,nts,mts):
        o=[]
        for i,(r,nt,mt) in enumerate(zip(regs,nts,mts)):
            e=2*(i%2)
            o.append(f"v_pk_fma_f32 {vr(T+2*i,2)}, {vr(CS+4*nt+e,2)}, {vr(RS+2*mt,2)}, {vr(B1+4*nt+e,2)} op_sel:[0,1,0] op_sel_hi:[1,1,1]")
        for i,(r,nt,mt) in enumerate(zip(regs,nts,mts)):
            o.append(f"v_pk_fma_f32 {vr(r,2)}, {vr(r,2)}, {vr(RS+2*mt,2)}, {vr(T+2*i,2)} op_sel:[0,0,0] op_sel_hi:[1,0,1]")
        return o
    for wn in range(2):
        if wn==1: a("L_ep1:")
        k=0
        pairs=[(0,1),(2,3),(4,5)] if wn==0 else [(1,2),(3,4),(5,6)]
        odd=6 if wn==0 else 0
        for pi,(t0,t1) in enumerate(pairs):
            for mt in range(4):
                regs=[(mt*7+t0)*4,(mt*7+t0)*4+2,(mt*7+t1)*4,(mt*7+t1)*4+2]
                o=OUT[k%4]; k+=1
                gelu_group(a,regs,T,[o,o+1,o+2,o+3],vK,pre(regs,[t0,t0,t1,t1],[mt]*4))
                a(f"buffer_store_dwordx4 {vr(o,4)}, v{HO}, {S(sH)}, s{63+pi} offen offset:{mt*1024} {hst}")
                a(f"ds_write_b128 v{HO}, {vr(o,4)} offset:{(pi+4*wn)*8192+mt*1024}")
        for mp_ in range(2):
            regs=[]; mts=[]
            for mt in (2*mp_,2*mp_+1): regs+=[(mt*7+odd)*4,(mt*7+odd)*4+2]; mts+=[mt,mt]
            o=OUT[k%4]; k+=1
            gelu_group(a,regs,T,[o,o+1,o+2,o+3],vK,pre(regs,[odd]*4,mts))
            for z in range(2):
                a(f"buffer_store_dwordx2 {vr(o+2*z,2)}, v{HO2}, {S(sH)}, s66 offen offset:{(2*mp_+z)*1024} {hst}")
                a(f"ds_write_b64 v{HO2}, {vr(o+2*z,2)} offset:{3*8192+(2*mp_+z)*1024}")
        if wn==0: a("s_branch L_epdone")
    a("L_epdone:")
    a(f"s_lshl_b32 s70, s{sI}, 1", f"s_add_u32 s70, s70, s{sS}", "s_lshl_b32 s70, s70, 7", f"s_lshl_b32 s71, s{sN}, 4", "s_add_u32 s70, s70, s71",
      "s_lshl_b32 s71, s3, 2", "s_add_u32 s70, s70, s71", f"s_add_u32 s70, s70, {O_HF}", f"v_mov_b32 v{JK+2}, 1", f"v_mov_b32 v{JK+3}, 0")
    P.mark("epi",True)
    a("s_waitcnt lgkmcnt(0)"); P.commit(); bar("E",True)
    H=[64,96]; W2=[80,112]
    def reads2(k,set_):
        ua=unitA(k); ub=unitB(k)
        ba=AD2+6*(ua>>16); oa=ua&0xffff; bb=AD2+6*(ub>>16); ob=ub&0xffff
        hr=[]
        for mt in range(4):
            r=H[set_]+4*mt
            if k%7==3: hr+=[f"ds_read_b64 {vr(r+2*z,2)}, v{ba+1} offset:{oa+mt*1024+z*512}" for z in range(2)]
            else: hr.append(f"ds_read_b128 {vr(r,4)}, v{ba} offset:{oa+mt*1024}")
        wr=[f"ds_read_b64_tr_b16 {vr(W2[set_]+4*nt+2*q,2)}, v{bb+2+nt} offset:{ob+q*4096}" for nt in range(4) for q in range(2)]
        return wr[0:2]+hr+wr[2:]
    def mf2(set_,first):
        o=[]
        for nt in range(4):
            for mt in range(4):
                c=(nt*4+mt)*4
                o.append(f"v_mfma_f32_16x16x32_bf16 {vr(c,4)}, {vr(W2[set_]+4*nt,4)}, {vr(H[set_]+4*mt,4)}, "+("0" if first else vr(c,4)))
        return o
    for x in reads2(0,0): a(x)
    for st in range(28):
        a("s_waitcnt lgkmcnt(0)"); P.commit()
        interleave(a, mf2(0,st==0), reads2(2*st+1,1))
        if st==0:
            P.mark("st0",True); a("s_waitcnt vmcnt(0)"); P.mark("hack",True)
            a("s_cmp_eq_u32 s72, 0", "s_cbranch_scc1 L_fl_fast")
            a("buffer_wbl2 sc1", "s_waitcnt vmcnt(0)", f"buffer_store_dword v{JK+2}, v{JK+3}, {S(sWS)}, s70 offen sc1", "s_branch L_fl_done")
            a("L_fl_fast:", f"buffer_store_dword v{JK+2}, v{JK+3}, {S(sWS)}, s70 offen "+("sc1" if hst else ""), "L_fl_done:")
        a("s_waitcnt lgkmcnt(0)")
        if st<27: bar(f"g{st}",True)
        if clean is not None and st==clean:
            a("s_cmp_lg_u32 s3, 0", "s_cbranch_scc1 L_noclean", "s_cmp_ge_u32 s2, 8", "s_cbranch_scc1 L_noclean", "buffer_wbl2 sc1", "L_noclean:")
        interleave(a, mf2(1,False), reads2(2*st+2,0) if st<27 else [])
    P.mark("G2end")
    a("s_lshl_b32 s63, s2, 15", "s_xor_b32 s64, s2, 1", "s_lshl_b32 s65, s64, 15", "s_add_u32 s66, s63, 4096", "s_add_u32 s67, s65, 4096")
    a("s_lshl_b32 s68, s2, 7", "s_lshl_b32 s69, s64, 7", "s_lshl_b32 s70, s3, 2", f"s_add_u32 s70, s70, {O_XF}", "s_add_u32 s68, s68, s70", "s_add_u32 s69, s69, s70")
    for t in range(8): a(f"buffer_store_dwordx4 {vr(32+4*t,4)}, v{XO}, {S(sWS)}, s{63 if t<4 else 66} offen offset:{(t%4)*1024} sc1")
    BF=112
    for nt in range(2):
        for d in range(2): a(f"v_lshlrev_b32 v{BF+4*nt+2*d}, 16, v{BI+2*nt+d}", f"v_and_b32 v{BF+4*nt+2*d+1}, 0xffff0000, v{BI+2*nt+d}")
    for i in range(16):
        nt=i//8
        a(f"v_pk_add_f32 {vr(2*i,2)}, {vr(2*i,2)}, {vr(BF+4*nt+2*(i%2),2)}")
    a("s_waitcnt vmcnt(0)")
    P.mark("sent")
    a(f"buffer_store_dword v{JK+2}, v{JK+3}, {S(sWS)}, s68 offen sc1", "s_mov_b32 s71, 0")
    a("L_x_poll:", f"buffer_load_dword v{JK}, v{JK+3}, {S(sWS)}, s69 offen sc1", "s_add_u32 s71, s71, 1", "s_waitcnt vmcnt(0)",
      f"v_cmp_ne_u32 vcc, 1, v{JK}", f"s_cmp_ge_u32 s71, {spin}", "s_cbranch_scc1 L_x_go", "s_nop 0", "s_cbranch_vccnz L_x_poll")
    a("L_x_go:")
    P.mark("xpolled")
    for t in range(8): a(f"buffer_load_dwordx4 {vr(64+4*t,4)}, v{XO}, {S(sWS)}, s{65 if t<4 else 67} offen offset:{(t%4)*1024} sc1")
    for mt in range(4):
        a(f"s_waitcnt vmcnt({3-mt+mt})" if mt else "s_waitcnt vmcnt(3)")
        for nt in range(2):
            c=(nt*4+mt)*4
            a(f"v_pk_add_f32 {vr(c,2)}, {vr(c,2)}, {vr(64+c,2)}", f"v_pk_add_f32 {vr(c+2,2)}, {vr(c+2,2)}, {vr(66+c,2)}")
        o=96+4*mt
        a(f"v_cvt_pk_bf16_f32 v{o}, v{4*mt}, v{4*mt+1}", f"v_cvt_pk_bf16_f32 v{o+1}, v{4*mt+2}, v{4*mt+3}")
        a(f"v_cvt_pk_bf16_f32 v{o+2}, v{16+4*mt}, v{17+4*mt}", f"v_cvt_pk_bf16_f32 v{o+3}, v{18+4*mt}, v{19+4*mt}")
        a(f"s_add_u32 s63, s75, {mt*32768}", "s_nop 0", f"v_permlane16_swap_b32 v{o}, v{o+2}", f"v_permlane16_swap_b32 v{o+1}, v{o+3}")
        a(f"buffer_store_dwordx4 {vr(o,4)}, v{OO}, {S(sOUT)}, s63 offen {outst}")
    if prof:
        P.mark("recv"); a("s_waitcnt vmcnt(0)"); P.mark("end"); P.mark("endrt",real=True); P.flush(2)
    a("L_end:", "s_endpgm")
    hdr=["; MLP-Mixer channel MLP in one launch: LayerNorm folded into GEMM1's epilogue, GELU, GEMM2 (split-K 2).",
         "; Generated by the author's own generator script.",
         "; @launch grid=(256,1,1) block=(512,1,1) lds=163840"]
    gen.names=P.names
    return header(hdr)+kstart(KN)+a.text()+RODATA+kdesc(KN)
if __name__=="__main__":
    import sys
    open(sys.argv[1],"w").write(gen())
```

```python
import genf
from asmlib import *
def probe(kind, aux, amp=20):
    a=Asm()
    a("s_cmp_ge_u32 s2, 256", "s_cbranch_scc1 L_end")
    a("s_load_dwordx16 s[4:19], s[0:1], 0", "s_waitcnt lgkmcnt(0)")
    srcs={"w":[(6,0,0x700000,28672),(10,0,0x700000,28672)], "x":[(4,0,0x400000,16384)], "wshead":[(18,64<<20,0xe00000,57344)], "wstail":[(18,(256<<20)-0xe00000,0xe00000,57344)],
          "ws0":[(18,0,0xe00000,57344)], "out":[(14,0,0x400000,16384)], "none":[]}[kind]
    a("v_lshlrev_b32 v1, 4, v0")
    for i,(p,off,size,share) in enumerate(srcs): genf.srd(a,20+4*i,p,off,size)
    a("s_barrier","s_memrealtime s[60:61]","s_waitcnt lgkmcnt(0)")
    n=0
    for i,(p,off,size,share) in enumerate(srcs):
        a(f"s_mul_i32 s62, s2, {share}")
        for o in range(0,share,8192):
            if share-o<8192: a(f"v_min_u32 v1, {share-o-16}, v1")
            a(f"s_add_u32 s63, s62, {o}", f"buffer_load_dwordx4 v[{8+4*n}:{11+4*n}], v1, s[{20+4*i}:{23+4*i}], s63 offen {aux}"); n+=1
        a("v_lshlrev_b32 v1, 4, v0")
    a("s_waitcnt vmcnt(0)","s_barrier","s_memrealtime s[64:65]","s_waitcnt lgkmcnt(0)")
    a("s_sub_u32 s66, s64, s60", f"s_mul_i32 s66, s66, {amp}")
    a("L_pw:","s_memrealtime s[68:69]","s_waitcnt lgkmcnt(0)","s_sub_u32 s67, s68, s64","s_cmp_lt_u32 s67, s66","s_cbranch_scc1 L_pw")
    s=genf.gen()
    k=genf.KN+":\n"
    i=s.index(k)+len(k)
    return s[:i]+a.text()+s[i:]
if __name__=="__main__":
    for kind,aux in [("none",""),("w",""),("w","nt"),("x",""),("wshead",""),("wstail",""),("ws0",""),("out","")]:
        open(f"probe_{kind}{aux}.s","w").write(probe(kind,aux))
```
